```python
import torch

def _softmax(x, axis=-1):
    return torch.softmax(x, dim=axis)
def _gelu(x):
    return torch.nn.functional.gelu(x, approximate="tanh")
def _silu(x):
    return torch.nn.functional.silu(x)
def _sigmoid(x):
    return torch.sigmoid(x)
def _layernorm(x, axis=-1, eps=1e-5):
    m = x.mean(dim=axis, keepdim=True)
    v = x.var(dim=axis, keepdim=True, unbiased=False)
    return (x - m) / torch.sqrt(v + eps)
def _scatter_add(tgt, idx, src, axis=0):
    return tgt.clone().index_add_(axis, idx, src)
def _segment_sum(src, seg, n):
    out = torch.zeros((n,) + src.shape[1:], dtype=src.dtype)
    return out.index_add_(0, seg, src)
def _pad(x, pw):
    flat = tuple(v for pair in reversed(pw) for v in pair)
    return torch.nn.functional.pad(x, flat)

kernel_name = 'gated_mix__mha_block_cached__glu_gated_glu__decode'

def setup_inputs():

    _w = (lambda a: (lambda t: t.to(torch.bfloat16) if t.is_floating_point() else t)(torch.as_tensor(a)))
    def _A_setup():
        B, Sq, D = 2, 1, 448
        H, Sk, Dh = 16, 8192, 256
        return {
            "x": _w((lambda *s: torch.randn(*s, dtype=torch.bfloat16) * 0.05)(B, Sq, D)),
            "k_cache": _w((lambda *s: torch.randn(*s, dtype=torch.bfloat16) * 6.4)(B, H, Sk, Dh)),
            "v_cache": _w((lambda *s: torch.randn(*s, dtype=torch.bfloat16) * 0.4)(B, H, Sk, Dh)),
            "wq": _w((lambda *s: torch.randn(*s, dtype=torch.bfloat16) * 6.4)(D, H * Dh) * (D ** -0.5)),
            "wo": _w((lambda *s: torch.randn(*s, dtype=torch.bfloat16) * 0.4)(H * Dh, D) * ((H * Dh) ** -0.5)),
        }
    _A_in = _A_setup()

    def _B_setup():
        B, S, D, F = 2, 1, 448, 1792
        return {
            "x": _w((lambda *s: torch.randn(*s, dtype=torch.bfloat16) * 0.05)(B, S, D)),
            "w_gate": _w((lambda *s: torch.randn(*s, dtype=torch.bfloat16) * 0.4)(D, F)),
            "w_up": _w((lambda *s: torch.randn(*s, dtype=torch.bfloat16) * 0.05)(D, F)),
            "w_down": _w((lambda *s: torch.randn(*s, dtype=torch.bfloat16) * 0.05)(F, D)),
        }
    _B_in = _B_setup()

    return {
        "A_x": _A_in["x"],
        "A_k_cache": _A_in["k_cache"],
        "A_v_cache": _A_in["v_cache"],
        "A_wq": _A_in["wq"],
        "A_wo": _A_in["wo"],
        "B_x": _B_in["x"],
        "B_w_gate": _B_in["w_gate"],
        "B_w_up": _B_in["w_up"],
        "B_w_down": _B_in["w_down"],
        "gate_w": _w((lambda *s: torch.randn(*s, dtype=torch.bfloat16) * 0.05)(448) * 16.0),
    }

def reference(A_x, A_k_cache, A_v_cache, A_wq, A_wo, B_x, B_w_gate, B_w_up, B_w_down, gate_w):
    def _A_ref(x, k_cache, v_cache, wq, wo):
        B, Sq, D = x.shape
        H, Dh = 16, 256
        q = (lambda x, *d: x.permute(*d))((x @ wq).reshape(B, Sq, H, Dh), 0, 2, 1, 3)
        scores = torch.einsum("bhqd,bhkd->bhqk", q, k_cache) * (Dh ** -0.5)
        p = _softmax(scores, axis=-1)
        o = torch.einsum("bhqk,bhkd->bhqd", p, v_cache)
        return (lambda x, *d: x.permute(*d))(o, 0, 2, 1, 3).reshape(B, Sq, H * Dh) @ wo

    def _B_ref(x, w_gate, w_up, w_down):
        g = torch.einsum("bsd,df->bsf", x, w_gate)
        u = torch.einsum("bsd,df->bsf", x, w_up)
        h = _sigmoid(g) * u
        return torch.einsum("bsf,fd->bsd", h, w_down)

    x = A_x
    g = _sigmoid((x * gate_w).sum(-1, keepdims=True))
    a = _A_ref(x, A_k_cache, A_v_cache, A_wq, A_wo)
    b = _B_ref(x, B_w_gate, B_w_up, B_w_down)
    return g * a + (1 - g) * b
```

```python
import re

REG = re.compile(r'(?<![\w.])([vas])(?:\[(\d+):(\d+)\]|(\d+))(?![\w])')
def regs_of(tok):
    out = []
    for m in REG.finditer(tok):
        k = m.group(1)
        if m.group(2) is not None:
            out += [(k, i) for i in range(int(m.group(2)), int(m.group(3))+1)]
        else:
            out.append((k, int(m.group(4))))
    if re.search(r'\bvcc\b', tok): out += [('s', 106), ('s', 107)]
    if re.search(r'\bexec\b', tok): out += [('s', 126), ('s', 127)]
    if re.search(r'\bexec_lo\b', tok): out += [('s', 126)]
    if re.search(r'\bexec_hi\b', tok): out += [('s', 127)]
    if re.search(r'\bm0\b', tok): out += [('s', 124)]
    return out

TRANS = ('v_exp_f32', 'v_log_f32', 'v_rcp_f32', 'v_rsq_f32', 'v_sqrt_f32', 'v_sin_f32', 'v_cos_f32', 'v_rcp_iflag_f32')
RMW = ('v_fmac_f32', 'v_dot2c_f32_bf16', 'v_pk_fmac', 'v_writelane_b32')

class Ins:
    __slots__ = ('text', 'mn', 'kind', 'w', 'r', 'pos', 'dpp', 'srcC', 'srcAB', 'passes', 'stdata')
    def __init__(self, text):
        self.text = text
        t = text.split(';')[0].strip()
        parts = t.split(None, 1)
        mn = parts[0]; self.mn = mn
        rest = parts[1] if len(parts) > 1 else ''
        ops = [o.strip() for o in rest.split(',')] if rest else []
        self.dpp = bool(re.search(r'quad_perm|row_shl|row_shr|row_ror|wave_|row_mirror|row_half_mirror|row_bcast|row_newbcast', rest))
        self.srcC = []; self.srcAB = []; self.passes = 0; self.stdata = []
        R = lambda i: regs_of(ops[i]) if i < len(ops) else []
        allr = lambda a: [x for i in range(a, len(ops)) for x in regs_of(ops[i])]
        base = re.sub(r'_(e32|e64|dpp|sdwa)$', '', mn)
        if mn.startswith('v_mfma') or mn.startswith('v_smfmac'):
            self.kind = 'mfma'; self.w = R(0); self.srcAB = R(1) + R(2)
            self.srcC = R(3) if mn.startswith('v_mfma') else R(0)
            if mn.startswith('v_smfmac'): self.srcAB += R(3)
            self.r = self.srcAB + self.srcC
            self.passes = 8 if '32x32' in mn else 4
        elif mn.startswith('v_'):
            self.kind = 'valu'
            if base.startswith('v_cmp'):
                self.w = R(0); self.r = allr(1)
            elif base.startswith('v_permlane') and 'swap' in base:
                self.w = R(0) + R(1); self.r = R(0) + R(1)
            elif base in ('v_add_co_u32', 'v_sub_co_u32', 'v_subrev_co_u32'):
                self.w = R(0) + R(1); self.r = allr(2)
            elif base in ('v_addc_co_u32', 'v_subb_co_u32'):
                self.w = R(0) + R(1); self.r = allr(2)
            else:
                self.w = R(0); self.r = allr(1)
                if base in RMW or self.dpp: self.r = self.r + R(0)
                if base == 'v_cndmask_b32' and len(ops) == 3: self.r = self.r + [('s', 106), ('s', 107)]
        elif mn.startswith('buffer_') or mn.startswith('global_'):
            self.kind = 'vmem'
            if 'load' in mn and 'lds' not in rest.split():
                self.w = R(0); self.r = allr(1)
            elif mn.startswith('buffer_store') or mn.startswith('buffer_atomic'):
                self.w = R(0) if (' sc0' in rest and 'atomic' in mn) else []; self.r = allr(0)
                if 'x3' in mn or 'x4' in mn: self.stdata = R(0)
            elif mn.startswith('global_store'):
                self.w = []; self.r = allr(0)
                if 'x3' in mn or 'x4' in mn: self.stdata = R(1)
            elif mn.startswith('global_atomic'):
                if ' sc0' in rest: self.w = R(0); self.r = allr(1)
                else: self.w = []; self.r = allr(0)
            else:
                self.w = []; self.r = allr(0)
        elif mn.startswith('ds_'):
            self.kind = 'ds'
            if mn.startswith('ds_read') or mn.startswith('ds_bpermute') or mn.startswith('ds_swizzle') or '_rtn' in mn or mn.startswith('ds_permute'):
                self.w = R(0); self.r = allr(1)
            else:
                self.w = []; self.r = allr(0)
        elif mn.startswith('s_'):
            self.kind = 'salu'
            if mn in ('s_waitcnt', 's_nop', 's_barrier', 's_endpgm', 's_sleep', 's_setprio', 's_branch') or mn.startswith('s_cbranch'):
                self.w = []; self.r = []
            elif mn.startswith('s_cmp') or mn.startswith('s_bitcmp'):
                self.w = []; self.r = allr(0)
            elif 'saveexec' in mn:
                self.w = R(0) + [('s', 126), ('s', 127)]; self.r = allr(1)
            else:
                self.w = R(0); self.r = allr(1)
        else:
            raise ValueError("unknown instruction: " + text)

def overlap(a, b):
    sb = set(b)
    return any(x in sb for x in a)
def isvec(rs): return [x for x in rs if x[0] in 'va']
def issgpr(rs): return [x for x in rs if x[0] == 's']

def need(prev, cur):
    n = 0
    pw_v = isvec(prev.w); pw_s = issgpr(prev.w)
    if prev.kind == 'valu':
        if cur.kind == 'valu' and cur.dpp and overlap(pw_v, cur.r): n = max(n, 2)
        if cur.kind == 'mfma' and overlap(pw_v, cur.r): n = max(n, 2)
        if cur.kind == 'valu' and cur.mn.startswith('v_permlane') and overlap(pw_v, cur.r): n = max(n, 2)
        if cur.kind == 'valu' and (cur.mn.startswith('v_readlane') or cur.mn.startswith('v_readfirstlane')) and overlap(pw_v, cur.r): n = max(n, 1)
        if pw_s:
            if cur.kind == 'vmem' and overlap(pw_s, cur.r): n = max(n, 5)
            if cur.kind == 'valu' and overlap(pw_s, cur.r): n = max(n, 4 if ('lane' in cur.mn) else 2)
            if cur.kind == 'salu' and overlap(pw_s, cur.r): n = max(n, 3)
            if cur.kind == 'salu' and cur.mn.startswith('s_cbranch_vcc') and overlap(pw_s, [('s',106),('s',107)]): n = max(n, 5)
        if prev.mn.startswith('v_dot') and cur.kind in ('valu', 'vmem', 'ds') and cur.mn != prev.mn and (overlap(pw_v, cur.r) or overlap(pw_v, cur.w)): n = max(n, 3)
        if prev.mn.startswith('v_dot') and cur.mn == prev.mn and overlap(pw_v, cur.r[:-1] if False else [x for x in cur.r if x not in cur.w]): n = max(n, 3)
        if any(prev.mn.startswith(t) for t in TRANS) and cur.kind in ('valu',) and overlap(pw_v, cur.r): n = max(n, 1)
        if 'sdwa' in prev.text or 'op_sel' in prev.text:
            if cur.kind == 'valu' and overlap(pw_v, cur.r): n = max(n, 1)
    if prev.kind == 'salu':
        if (('s', 126) in prev.w or ('s', 127) in prev.w) and cur.kind == 'valu' and cur.dpp: n = max(n, 5)
        if (('s', 126) in prev.w or ('s', 127) in prev.w) and cur.kind == 'mfma': n = max(n, 4)
        if ('s', 124) in prev.w and cur.kind in ('vmem', 'ds'): n = max(n, 1)
    if prev.kind == 'mfma':
        p = prev.passes
        big = {4: 8, 8: 12}[p]; part = {4: 6, 8: 10}[p]; war = {4: 3, 8: 7}[p]
        if cur.kind == 'mfma':
            if overlap(prev.w, cur.srcAB): n = max(n, big)
            if overlap(prev.w, cur.srcC):
                if not (sorted(prev.w) == sorted(cur.srcC) and prev.passes == cur.passes): n = max(n, part)
            elif overlap(prev.w, cur.w): n = max(n, big)
        elif cur.kind in ('valu', 'vmem', 'ds'):
            if overlap(prev.w, cur.r) or overlap(prev.w, cur.w): n = max(n, big)
            if cur.kind == 'valu' and overlap(prev.srcC, cur.w): n = max(n, war)
    if prev.kind == 'vmem' and prev.stdata:
        if overlap(prev.stdata, cur.w): n = max(n, 2)
    return n

class Prog:
    def __init__(self):
        self.L = []
        self.hist = []
        self.pos = 0
        self.vm = []; self.nvm = 0
        self.nops = 0
        self.ninst = 0
    def raw(self, s): self.L.append(s)
    def comment(self, s): self.L.append("  ; " + s)
    def label(self, s):
        self.L.append(s + ":")
    def flush(self, n=20):
        self.pad(n)
    def pad(self, n):
        need_n = 0
        for p in self.hist:
            if p.kind in ('mfma', 'valu') or p.stdata or (p.kind == 'salu' and p.w):
                lim = 12 if p.kind == 'mfma' else 5
                d = self.pos - p.pos - 1
                need_n = max(need_n, min(n, lim) - d)
        self._nop(need_n)
        self.hist = []
    def _nop(self, n):
        while n > 0:
            k = min(n, 16)
            self.L.append(f"  s_nop {k-1}")
            self.pos += k; self.nops += k; n -= k
    def A(self, text):
        ins = Ins(text)
        req = 0
        for p in self.hist:
            nd = need(p, ins)
            if nd:
                d = self.pos - p.pos - 1
                req = max(req, nd - d)
        self._nop(req)
        ins.pos = self.pos
        if ins.mn == 's_nop':
            k = int(text.split()[1]) + 1
            self.pos += k
        else:
            self.pos += 1
        self.hist.append(ins)
        self.hist = [h for h in self.hist if self.pos - h.pos <= 24]
        self.L.append("  " + text)
        self.ninst += 1
        return ins
    def vmem(self, text):
        self.A(text)
        self.nvm += 1
        self.vm.append(self.nvm)
        assert len(self.vm) <= 63, "too many vmem ops in flight"
        return self.nvm
    def inflight(self): return len(self.vm)
    def wait_vm(self, op):
        if op is None or op not in self.vm: return
        i = self.vm.index(op)
        n = len(self.vm) - i - 1
        self.A(f"s_waitcnt vmcnt({n})")
        self.vm = self.vm[i+1:]
    def wait_inflight(self, n):
        if len(self.vm) > n:
            self.A(f"s_waitcnt vmcnt({n})")
            self.vm = self.vm[len(self.vm)-n:] if n else []
    def wait_all_vm(self):
        self.A("s_waitcnt vmcnt(0)"); self.vm = []
    def lgkm0(self): self.A("s_waitcnt lgkmcnt(0)")
    def text(self): return "\n".join(self.L) + "\n"
```

```python
def header(name, grid, block, lds, extra_comments=()):
    return list(extra_comments) + [f"; @launch grid=({grid},1,1) block=({block},1,1) lds={lds}",
            '.amdgcn_target "amdgcn-amd-amdhsa--gfx950"', ".text", f".globl {name}", ".p2align 8",
            f".type {name},@function", f"{name}:"]
def footer(name, nv, accum, nsgpr=102):
    return ['.section .rodata,"a"', ".p2align 6", f".amdhsa_kernel {name}",
            f"  .amdhsa_next_free_vgpr {nv}", f"  .amdhsa_next_free_sgpr {nsgpr}",
            f"  .amdhsa_accum_offset {accum}", "  .amdhsa_group_segment_fixed_size 0",
            "  .amdhsa_kernarg_size 104", "  .amdhsa_user_sgpr_count 2",
            "  .amdhsa_user_sgpr_kernarg_segment_ptr 1", "  .amdhsa_system_sgpr_workgroup_id_x 1",
            ".end_amdhsa_kernel"]
```

```python
import sys, math
from asmlib2 import Prog
from kcommon import header, footer

NAME = "gated_mix__mha_block_cached__glu_gated_glu__decode_kernel"

sW, sX8, sJ, sH, sB, sS, sBH, sP, sROLE = 3, 4, 5, 6, 7, 8, 9, 10, 11
sT0, sT1, sT2, sT3 = 12, 13, 14, 15
pX, pK, pV, pWQ, pWO, pXB, pWG, pWU = 16, 18, 20, 22, 24, 26, 28, 30
pWD, pGW, pOUT, pDBG, pWS = 32, 34, 36, 38, 40
rK, rV, rWQ, rWO, rX, rWS, rDBG, rOUT, rWD, rXB, rGW, rTMP = 44, 48, 52, 56, 60, 64, 68, 72, 76, 80, 84, 88
sC, sSPIN = 92, 93
sEX = 94
sOFF = 96
sRB, sRY, sRYB, sRCOL = 97, 98, 99, 100
sSTAMP = 42
vTID, vL, vI, vG = 0, 1, 2, 3
vKO, vVO, vWOO, vT = 4, 5, 6, 7
vM = 8
vQB = 12
vS = 20
vD = 36
vB = 44
vY = 52
vRW = 68
vRA = 76
vU = 78
vDG = 88
vRX = 92
RING0 = 96
NRING = (256 - RING0)//4
L_QPL, L_QB, L_MX, L_LW, L_OL, L_RED, L_YL = 0, 2048, 2560, 2688, 4096, 8192, 16384
LDS_BYTES = 32768
W_QP, W_Y, W_ML, W_YB, W_END = 0, 0x40000, 0xC0000, 0xC2000, 0xE0000
W_STAMP = 0x100000
EXP_C = math.log2(math.e)/16.0
import struct
def f2u(x): return struct.unpack('<I', struct.pack('<f', x))[0]

def vr(a, n=4): return f"v[{a}:{a+n-1}]"
def sr(a, n=4): return f"s[{a}:{a+n-1}]"

class Slots:
    def __init__(self):
        self.vfree = list(range(NRING)); self.afree = list(range(64))
    def getv(self): return ('v', self.vfree.pop(0))
    def geta(self, k=None):
        if k is None: return ('a', self.afree.pop(0))
        self.afree.remove(k); return ('a', k)
    def put(self, s):
        (self.vfree if s[0] == 'v' else self.afree).append(s[1])
    @staticmethod
    def reg(s):
        if s[0] == 'v':
            r = RING0 + 4*s[1]; return f"v[{r}:{r+3}]"
        return f"a[{4*s[1]}:{4*s[1]+3}]"

class Gen:
    def __init__(self, cfg):
        self.c = cfg
        self.P = Prog()
        self.diag = cfg.get('diag', False)
        self.W = cfg.get('W', 16)
    def A(self, t): return self.P.A(t)
    def stamp(self, k):
        if not self.diag: return
        A = self.A
        A(f"s_memrealtime s[{sSTAMP}:{sSTAMP+1}]")
        A("s_waitcnt lgkmcnt(0)")
        A(f"v_writelane_b32 v{vDG}, s{sSTAMP}, {k}")
    def prologue(self):
        A = self.A; P = self.P
        A("s_cmp_ge_u32 s2, 256")
        A("s_cbranch_scc1 L_end")
        A("s_load_dwordx16 s[16:31], s[0:1], 0")
        A("s_load_dwordx8 s[32:39], s[0:1], 64")
        A("s_load_dwordx2 s[40:41], s[0:1], 96")
        if self.diag:
            A(f"v_mov_b32 v{vDG}, 0")
            self.stamp(0)
        A(f"v_lshrrev_b32 v{vT}, 6, v0")
        A(f"v_and_b32 v{vL}, 63, v0")
        A(f"v_and_b32 v{vI}, 15, v0")
        A(f"v_readfirstlane_b32 s{sW}, v{vT}")
        A(f"v_bfe_u32 v{vG}, v0, 4, 2")
        A(f"s_and_b32 s{sX8}, s2, 7")
        A(f"s_lshr_b32 s{sJ}, s2, 3")
        A(f"s_lshr_b32 s{sT0}, s{sJ}, 4")
        A(f"s_lshl_b32 s{sT0}, s{sT0}, 3")
        A(f"s_add_u32 s{sH}, s{sX8}, s{sT0}")
        A(f"s_bfe_u32 s{sB}, s{sJ}, 0x10003")
        A(f"s_and_b32 s{sS}, s{sJ}, 7")
        A(f"s_lshl_b32 s{sBH}, s{sB}, 4")
        A(f"s_add_u32 s{sBH}, s{sBH}, s{sH}")
        A(f"s_lshl_b32 s{sP}, s{sBH}, 3")
        A(f"s_add_u32 s{sP}, s{sP}, s{sS}")
        A(f"v_and_b32 v{vT}, 3, v{vI}")
        A(f"v_lshl_add_u32 v{vT}, v{vG}, 2, v{vT}")
        A(f"v_lshlrev_b32 v{vT}, 4, v{vT}")
        A(f"v_lshrrev_b32 v{vKO}, 2, v{vI}")
        A(f"v_lshl_add_u32 v{vKO}, v{vKO}, 9, v{vT}")
        A(f"s_lshl_b32 s{sT0}, s{sW}, 12")
        A(f"v_add_u32 v{vKO}, s{sT0}, v{vKO}")
        A(f"v_lshlrev_b32 v{vT}, 4, v{vI}")
        A(f"v_lshl_add_u32 v{vVO}, v{vG}, 9, v{vT}")
        A(f"v_add_u32 v{vVO}, s{sT0}, v{vVO}")
        A(f"s_lshl_b32 s{sT1}, s{sW}, 6")
        A(f"v_add_u32 v{vWOO}, s{sT1}, v{vG}")
        A(f"v_mul_u32_u24 v{vWOO}, 896, v{vWOO}")
        A(f"v_add_u32 v{vWOO}, v{vWOO}, v{vT}")
        A(f"v_and_b32 v{vU}, 1, v{vI}")
        A(f"v_mov_b32 v{vU+1}, 0xffff")
        A(f"v_lshlrev_b32 v{vU}, 4, v{vU}")
        A(f"v_lshlrev_b32 v{vU+1}, v{vU}, v{vU+1}")
        A(f"v_lshrrev_b32 v{vU+2}, 1, v{vI}")
        for r in range(4):
            A(f"v_cmp_eq_u32 vcc, {r}, v{vU+2}")
            A(f"v_cndmask_b32 v{vM+r}, 0, v{vU+1}, vcc")
        A(f"s_mov_b32 s{sC}, {hex(f2u(EXP_C))}")
        A("s_waitcnt lgkmcnt(0)")
        def srd(r, p, size, add=None):
            if add is None:
                A(f"s_mov_b32 s{r}, s{p}"); A(f"s_and_b32 s{r+1}, s{p+1}, 0xffff")
            else:
                A(f"s_add_u32 s{r}, s{p}, s{add}"); A(f"s_addc_u32 s{r+1}, s{p+1}, 0"); A(f"s_and_b32 s{r+1}, s{r+1}, 0xffff")
            A(f"s_mov_b32 s{r+2}, {size}"); A(f"s_mov_b32 s{r+3}, 0x20000")
        self.srd = srd
        A(f"s_lshl_b32 s{sT0}, s{sP}, 19")
        srd(rK, pK, 524288, sT0)
        srd(rV, pV, 524288, sT0)
        A(f"s_lshl_b32 s{sT0}, s{sH}, 9")
        A(f"s_add_u32 s{rWQ}, s{pWQ}, s{sT0}"); A(f"s_addc_u32 s{rWQ+1}, s{pWQ+1}, 0"); A(f"s_and_b32 s{rWQ+1}, s{rWQ+1}, 0xffff")
        A(f"s_sub_u32 s{rWQ+2}, {448*8192}, s{sT0}"); A(f"s_mov_b32 s{rWQ+3}, 0x20000")
        A(f"s_mul_i32 s{sT0}, s{sH}, {256*896}")
        srd(rWO, pWO, 256*896, sT0)
        srd(rX, pX, 1792)
        srd(rWS, pWS, W_END if not self.diag else 0x200000)
        srd(rDBG, pDBG, 256)
        A(f"s_lshr_b32 s{sT0}, s{sJ}, 3")
        A(f"s_lshl_b32 s{sT0}, s{sT0}, 3")
        A(f"s_add_u32 s{sT0}, s{sT0}, s{sX8}")
        A(f"s_cmp_eq_u32 s{sS}, 0")
        A("s_cbranch_scc0 L_notB")
        A(f"s_cmp_lt_u32 s{sT0}, 28")
        A("s_cbranch_scc0 L_roleN")
        A(f"s_mov_b32 s{sROLE}, s{sT0}")
        A("s_branch L_roleB")
        P.label("L_notB")
        A(f"s_sub_u32 s{sT1}, s{sS}, 2")
        A(f"s_cmp_lt_u32 s{sT1}, 2")
        A("s_cbranch_scc0 L_roleN")
        A(f"s_lshl_b32 s{sT1}, s{sT1}, 5")
        A(f"s_add_u32 s{sROLE}, s{sT0}, s{sT1}")
        A(f"s_cmp_lt_u32 s{sROLE}, 56")
        A("s_cbranch_scc1 L_roleR")
        A("s_branch L_roleN")

    def bops(self, dst, src, lane, maskbase=vM):
        for r in range(4):
            self.A(f"v_and_b32_dpp v{dst+r}, v{src}, v{maskbase+r} row_newbcast:{lane} row_mask:0xf bank_mask:0xf")
    def mfma(self, d, a, b, c):
        self.A(f"v_mfma_f32_16x16x32_bf16 {d}, {a}, {b}, {c}")
    def spin_head(self):
        self.A(f"s_mov_b32 s{sSPIN}, 0")
    def spin_tail(self, loop, done):
        A = self.A
        A(f"s_add_u32 s{sSPIN}, s{sSPIN}, 1")
        A(f"s_cmp_lt_u32 s{sSPIN}, 0x40000")
        A(f"s_cbranch_scc0 {done}")
        A("s_sleep 4")
        A(f"s_branch {loop}")

    def program(self, role):
        A = self.A; P = self.P; W = self.W
        tag = role
        P.label(f"L_role{role}")
        P.hist = []; P.vm = []
        sl = Slots()
        NU = 32
        NG = 2*NU
        NT = 2*NG
        seq = [('K', i) for i in range(NT)] + [('V', i) for i in range(NT)]
        st = dict(issued=0, last=None)
        self.st = st
        ops = {}; slot = {}
        def issue_kv(force_a=False):
            n = st['issued']
            if n >= len(seq): return False
            kind, i = seq[n]
            if kind == 'K' and i < 64: s = sl.geta()
            else:
                if not sl.vfree: return False
                s = sl.getv()
            u, g_, t = i//4, (i//2) % 2, i % 2
            so = u*16384
            if st['last'] != so:
                A(f"s_mov_b32 s{sOFF}, {so}")
            st['last'] = so
            srd_, vo = (rK, vKO) if kind == 'K' else (rV, vVO)
            ops[n] = P.vmem(f"buffer_load_dwordx4 {Slots.reg(s)}, v{vo}, {sr(srd_)}, s{sOFF} offen offset:{g_*2048 + t*256} nt")
            slot[n] = s
            st['issued'] += 1
            return True
        def issue_throttled(upto):
            while st['issued'] < upto:
                P.wait_inflight(W-1)
                assert issue_kv()
        def burst(n):
            for _ in range(n): assert issue_kv()
        wo_state = dict(n=0)
        wo_ops = {}
        def issue_wo():
            n = wo_state['n']
            if n >= 64: return False
            if n not in sl.afree: return False
            s = sl.geta(n)
            grp, cb = n//4, n % 4
            so = grp*3584
            A(f"s_mov_b32 s{sOFF}, {so}"); st['last'] = None
            wo_ops[n] = P.vmem(f"buffer_load_dwordx4 {Slots.reg(s)}, v{vWOO}, {sr(rWO)}, s{sOFF} offen offset:{[0,256,512,640][cb]} nt")
            wo_state['n'] += 1
            return True

        A(f"s_mul_i32 s{sT0}, s{sS}, 56")
        A(f"s_lshr_b32 s{sT1}, s{sW}, 1")
        A(f"s_mul_i32 s{sT1}, s{sT1}, 28")
        A(f"s_add_u32 s{sT0}, s{sT0}, s{sT1}")
        A(f"v_min_u32 v{vU}, 6, v{vI}")
        A(f"v_lshl_add_u32 v{vU}, v{vU}, 2, v{vG}")
        A(f"v_add_u32 v{vU}, s{sT0}, v{vU}")
        A(f"v_lshlrev_b32 v{vU}, 1, v{vU}")
        A(f"s_mul_i32 s{sT1}, s{sB}, 896")
        vXC = vU+3
        opx = P.vmem(f"buffer_load_ushort v{vXC}, v{vU}, {sr(rX)}, s{sT1} offen")
        A(f"v_lshlrev_b32 v{vT}, 4, v{vI}")
        A(f"v_lshl_add_u32 v{vT}, v{vG}, 13, v{vT}")
        A(f"s_lshl_b32 s{sT0}, s{sT0}, 13")
        A(f"s_and_b32 s{sT1}, s{sW}, 1")
        A(f"s_lshl_b32 s{sT1}, s{sT1}, 8")
        A(f"s_add_u32 s{sT0}, s{sT0}, s{sT1}")
        qs = []; qo = []
        for n in range(7):
            s = sl.getv(); qs.append(s)
            qo.append(P.vmem(f"buffer_load_dwordx4 {Slots.reg(s)}, v{vT}, {sr(rWQ)}, s{sT0} offen nt"))
            if n < 6: A(f"s_add_u32 s{sT0}, s{sT0}, 32768")
        A(f"v_mov_b32 v{vU+4}, -1"); A(f"v_mov_b32 v{vU+5}, -1")
        A(f"v_lshlrev_b32 v{vU+1}, 3, v{vTID}")
        A(f"s_lshl_b32 s{sT0}, s{sP}, 11")
        A(f"s_add_u32 s{sT0}, s{sT0}, {W_Y}")
        P.vmem(f"buffer_store_dwordx2 v[{vU+4}:{vU+5}], v{vU+1}, {sr(rWS)}, s{sT0} offen sc1")
        vONE = vU+6
        A(f"v_cmp_eq_u32 vcc, 0, v{vTID}")
        A(f"v_mov_b32 v{vU+2}, 0x7ff00000")
        A(f"v_mov_b32 v{vONE}, 0")
        A(f"v_cndmask_b32 v{vONE}, v{vU+2}, v{vONE}, vcc")
        A(f"s_lshl_b32 s{sT1}, s{sP}, 3")
        A(f"s_add_u32 s{sT1}, s{sT1}, {W_ML}")
        P.vmem(f"buffer_store_dwordx2 v[{vU+4}:{vU+5}], v{vONE}, {sr(rWS)}, s{sT1} offen sc1")
        if role == 'B':
            A(f"v_mov_b32 v{vB}, -1"); A(f"v_mov_b32 v{vB+1}, -1"); A(f"v_mov_b32 v{vB+2}, -1"); A(f"v_mov_b32 v{vB+3}, -1")
            A(f"v_lshlrev_b32 v{vU+1}, 4, v{vTID}")
            A(f"s_lshl_b32 s{sT0}, s{sROLE}, 12")
            A(f"s_add_u32 s{sT0}, s{sT0}, {W_YB}")
            P.vmem(f"buffer_store_dwordx4 {vr(vB)}, v{vU+1}, {sr(rWS)}, s{sT0} offen sc1")
        bstate = None
        if role == 'B':
            bstate = self.b_setup(sl)
        else:
            burst(W)
        self.stamp(1)
        P.wait_vm(opx)
        A(f"v_lshl_or_b32 v{vXC}, v{vXC}, 16, v{vXC}")
        for n in range(7):
            bb = vB + 4*(n % 2)
            self.bops(bb, vXC, n)
            P.wait_vm(qo[n])
            self.mfma(vr(vD), Slots.reg(qs[n]), vr(bb), "0" if n == 0 else vr(vD))
            sl.put(qs[n])
        A(f"s_and_b32 s{sT0}, s{sW}, 1"); A(f"s_lshl_b32 s{sT0}, s{sT0}, 10")
        A(f"s_lshr_b32 s{sT1}, s{sW}, 1"); A(f"s_lshl_b32 s{sT1}, s{sT1}, 2")
        A(f"s_add_u32 s{sT0}, s{sT0}, s{sT1}")
        A(f"v_lshl_add_u32 v{vU}, v{vG}, 5, v{vI}")
        A(f"v_lshlrev_b32 v{vU}, 3, v{vU}")
        A(f"v_add_u32 v{vU}, s{sT0}, v{vU}")
        A("s_mov_b32 exec_lo, 0x00ff00ff"); A("s_mov_b32 exec_hi, 0x00ff00ff")
        A(f"ds_write2_b32 v{vU}, v{vD}, v{vD+1} offset0:{L_QPL//4} offset1:{L_QPL//4+16}")
        A(f"ds_write2_b32 v{vU}, v{vD+2}, v{vD+3} offset0:{L_QPL//4+32} offset1:{L_QPL//4+48}")
        A("s_mov_b64 exec, -1")
        if role == 'B': self.b_stream(sl, bstate, 8)
        P.lgkm0(); A("s_barrier")
        A(f"v_lshlrev_b32 v{vU}, 3, v{vTID}")
        A(f"ds_read_b64 v[{vU+4}:{vU+5}], v{vU} offset:{L_QPL}")
        A(f"v_lshlrev_b32 v{vU+1}, 2, v{vTID}")
        A(f"s_lshl_b32 s{sT0}, s{sP}, 10")
        P.lgkm0()
        A(f"v_add_f32 v{vU+4}, v{vU+4}, v{vU+5}")
        opq = P.vmem(f"buffer_store_dword v{vU+4}, v{vU+1}, {sr(rWS)}, s{sT0} offen sc1")
        if role == 'B': self.b_stream(sl, bstate, 8)
        else: burst(8)
        P.wait_vm(opq)
        A("s_barrier")
        A(f"v_mov_b32 v{vU+4}, 1")
        A(f"s_lshl_b32 s{sT0}, s{sBH}, 2")
        P.vmem(f"buffer_atomic_add v{vU+4}, v{vONE}, {sr(rDBG)}, s{sT0} offen")
        self.stamp(2)
        if role == 'B':
            self.b_rest(sl, bstate)
        issue_throttled(self.c.get('poll_at', 44))
        A(f"v_mov_b32 v{vU}, 0")
        A(f"s_lshl_b32 s{sT2}, s{sBH}, 2")
        opp = P.vmem(f"buffer_load_dword v{vU+4}, v{vU}, {sr(rDBG)}, s{sT2} offen sc1")
        burst(min(12, 63 - P.inflight()))
        P.wait_vm(opp)
        A(f"v_readfirstlane_b32 s{sT0}, v{vU+4}")
        A(f"s_cmp_ge_u32 s{sT0}, 8")
        A(f"s_cbranch_scc1 L_qok{tag}")
        self.spin_head()
        saved = list(P.vm)
        P.label(f"L_qspin{tag}")
        A(f"buffer_load_dword v{vU+4}, v{vU}, {sr(rDBG)}, s{sT2} offen sc1")
        A("s_waitcnt vmcnt(0)")
        A(f"v_readfirstlane_b32 s{sT0}, v{vU+4}")
        A(f"s_cmp_ge_u32 s{sT0}, 8")
        A(f"s_cbranch_scc1 L_qok{tag}")
        self.spin_tail(f"L_qspin{tag}", f"L_qok{tag}")
        P.label(f"L_qok{tag}")
        P.vm = saved
        self.stamp(3)
        A(f"v_lshlrev_b32 v{vU}, 2, v{vTID}")
        A(f"s_lshl_b32 s{sT0}, s{sBH}, 13")
        go = []
        for m in range(8):
            if m == 4: A(f"s_add_u32 s{sT0}, s{sT0}, 4096")
            go.append(P.vmem(f"buffer_load_dword v{vY+m}, v{vU}, {sr(rWS)}, s{sT0} offen offset:{(m % 4)*1024} sc1"))
        st['last'] = None
        burst(min(12, 63 - P.inflight()))
        P.wait_vm(go[-1])
        A(f"v_add_f32 v{vY}, v{vY}, v{vY+1}"); A(f"v_add_f32 v{vY+2}, v{vY+2}, v{vY+3}")
        A(f"v_add_f32 v{vY+4}, v{vY+4}, v{vY+5}"); A(f"v_add_f32 v{vY+6}, v{vY+6}, v{vY+7}")
        A(f"v_add_f32 v{vY}, v{vY}, v{vY+2}"); A(f"v_add_f32 v{vY+4}, v{vY+4}, v{vY+6}")
        A(f"v_add_f32 v{vY}, v{vY}, v{vY+4}")
        A(f"v_cvt_pk_bf16_f32 v{vY}, v{vY}, v{vY}")
        A(f"v_lshlrev_b32 v{vU}, 1, v{vTID}")
        A(f"ds_write_b16 v{vU}, v{vY} offset:{L_QB}")
        A(f"v_and_b32 v{vU+1}, 3, v{vI}")
        A(f"v_lshl_add_u32 v{vU+1}, v{vG}, 2, v{vU+1}")
        A(f"v_lshlrev_b32 v{vU+1}, 4, v{vU+1}")
        P.lgkm0(); A("s_barrier")
        A(f"ds_read_b128 {vr(vQB)}, v{vU+1} offset:{L_QB}")
        A(f"ds_read_b128 {vr(vQB+4)}, v{vU+1} offset:{L_QB+256}")
        P.lgkm0()
        self.stamp(4)
        for n in range(NG):
            d = vD + 4*(n % 2)
            P.wait_vm(ops[2*n+1])
            self.mfma(vr(d), Slots.reg(slot[2*n]), vr(vQB), "0")
            self.mfma(vr(d), Slots.reg(slot[2*n+1]), vr(vQB+4), vr(d))
            sl.put(slot[2*n]); sl.put(slot[2*n+1])
            while st['issued'] < min(len(seq), 2*n + 2 + W) and issue_kv(): pass
            if n > 0: self.reduce_scores(n-1)
        self.reduce_scores(NG-1)
        self.stamp(5)
        t0 = vU
        A(f"v_max3_f32 v{t0}, v{vS}, v{vS+1}, v{vS+2}")
        for m in range(3, 15, 2):
            A(f"v_max3_f32 v{t0}, v{t0}, v{vS+m}, v{vS+m+1}")
        A(f"v_max_f32 v{t0}, v{t0}, v{vS+15}")
        A(f"v_mov_b32_dpp v{t0+1}, v{t0} quad_perm:[0,0,0,0] row_mask:0xf bank_mask:0xf")
        A(f"v_max_f32_dpp v{t0}, v{t0+1}, v{t0+1} row_ror:4 row_mask:0xf bank_mask:0xf")
        A(f"v_max_f32_dpp v{t0+1}, v{t0}, v{t0} row_ror:8 row_mask:0xf bank_mask:0xf")
        A(f"s_lshl_b32 s{sT0}, s{sW}, 4")
        A(f"v_lshlrev_b32 v{t0+2}, 2, v{vG}")
        A(f"v_add_u32 v{t0+2}, s{sT0}, v{t0+2}")
        A(f"ds_write_b32 v{t0+2}, v{t0+1} offset:{L_MX}")
        P.lgkm0(); A("s_barrier")
        A(f"v_mov_b32 v{t0+3}, 0")
        for k in range(4):
            A(f"ds_read_b128 {vr(vY+4*k)}, v{t0+3} offset:{L_MX+16*k}")
        P.lgkm0()
        A(f"v_max3_f32 v{t0}, v{vY}, v{vY+1}, v{vY+2}")
        for m in range(3, 15, 2):
            A(f"v_max3_f32 v{t0}, v{t0}, v{vY+m}, v{vY+m+1}")
        A(f"v_max_f32 v{t0}, v{t0}, v{vY+15}")
        A(f"v_mul_f32 v{t0}, s{sC}, v{t0}")
        vMC = t0
        for m in range(16):
            A(f"v_fma_f32 v{vS+m}, v{vS+m}, s{sC}, -v{vMC}")
        for m in range(16):
            A(f"v_exp_f32 v{vS+m}, v{vS+m}")
        A(f"v_add_f32 v{t0+1}, v{vS}, v{vS+1}")
        for m in range(2, 16):
            A(f"v_add_f32 v{t0+1}, v{t0+1}, v{vS+m}")
        for m in range(16):
            A(f"v_cvt_pk_bf16_f32 v{vS+m}, v{vS+m}, v{vS+m}")
        A(f"v_mov_b32_dpp v{t0+3}, v{t0+1} quad_perm:[0,0,0,0] row_mask:0xf bank_mask:0xf")
        A(f"v_add_f32_dpp v{t0+1}, v{t0+3}, v{t0+3} row_ror:4 row_mask:0xf bank_mask:0xf")
        A(f"v_add_f32_dpp v{t0+3}, v{t0+1}, v{t0+1} row_ror:8 row_mask:0xf bank_mask:0xf")
        A(f"ds_write_b32 v{t0+2}, v{t0+3} offset:{L_LW}")
        P.lgkm0(); A("s_barrier")
        A(f"v_mov_b32 v{t0+3}, 0")
        for k in range(4):
            A(f"ds_read_b128 {vr(vY+4*k)}, v{t0+3} offset:{L_LW+16*k}")
        P.lgkm0()
        for a_, b_ in [(0,1),(2,3),(4,5),(6,7),(8,9),(10,11),(12,13),(14,15),(0,2),(4,6),(8,10),(12,14),(0,4),(8,12),(0,8)]:
            A(f"v_add_f32 v{vY+a_}, v{vY+a_}, v{vY+b_}")
        A(f"v_min_u32 v{vB}, -2, v{vMC}")
        A(f"v_min_u32 v{vB+1}, -2, v{vY}")
        A(f"v_cmp_eq_u32 vcc, 0, v{vTID}")
        A(f"v_mov_b32 v{vU+4}, 0x7ff00000"); A(f"v_mov_b32 v{vU+5}, 0")
        A(f"v_cndmask_b32 v{vU+4}, v{vU+4}, v{vU+5}, vcc")
        A(f"s_lshl_b32 s{sT1}, s{sP}, 3")
        A(f"s_add_u32 s{sT1}, s{sT1}, {W_ML}")
        P.vmem(f"buffer_store_dwordx2 v[{vB}:{vB+1}], v{vU+4}, {sr(rWS)}, s{sT1} offen sc1")
        self.stamp(6)
        def tail_addresses():
            A(f"v_lshl_add_u32 v{vU}, v{vG}, 5, v{vI}")
            A(f"v_lshlrev_b32 v{vU}, 4, v{vU}")
            A(f"s_lshl_b32 s{sT0}, s{sW}, 2")
            A(f"s_add_u32 s{sT0}, s{sT0}, {L_OL}")
            A(f"v_add_u32 v{vU}, s{sT0}, v{vU}")
            A(f"v_add_u32 v{vU+1}, 2048, v{vU}")
            A(f"v_lshrrev_b32 v{vU+2}, 2, v{vI}")
            A(f"v_lshl_add_u32 v{vU+2}, v{vU+2}, 2, v{vG}")
            A(f"s_lshl_b32 s{sT1}, s{sW}, 10")
            A(f"s_add_u32 s{sT1}, s{sT1}, {L_OL}")
            A(f"v_lshlrev_b32 v{vU+2}, 4, v{vU+2}")
            A(f"v_add_u32 v{vU+2}, s{sT1}, v{vU+2}")
            A(f"v_lshlrev_b32 v{vU+3}, 4, v{vL}")
            A(f"s_lshl_b32 s{sT2}, s{sW}, 12")
            A(f"v_add_u32 v{vU+4}, s{sT2}, v{vU+3}")
            A(f"s_lshl_b32 s{sT2}, s{sW}, 10")
            A(f"v_add_u32 v{vU+5}, s{sT2}, v{vU+3}")
            A(f"v_lshl_add_u32 v{vU+6}, v{vG}, 3, v{vI}")
            A(f"v_lshlrev_b32 v{vU+6}, 4, v{vU+6}")
            A(f"s_lshl_b32 s{sT2}, s{sW}, 9")
            A(f"v_add_u32 v{vU+6}, s{sT2}, v{vU+6}")
            A(f"v_mov_b32 v{vU+7}, 0x7ff00000")
            A(f"v_cmp_gt_u32 vcc, 8, v{vI}")
            A(f"v_cndmask_b32 v{vU+6}, v{vU+7}, v{vU+6}, vcc")
            A(f"s_lshl_b32 s{sT3}, s{sP}, 11")
            A(f"s_add_u32 s{sT3}, s{sT3}, {W_Y}")
        base = NT
        self.bops(vB, vS, 0)
        for n in range(NG):
            bb = vB + 4*(n % 2)
            if n+1 < NG:
                self.bops(vB + 4*((n+1) % 2), vS + ((n+1) >> 2), 4*((n+1) & 3))
            P.wait_vm(ops[base+2*n+1])
            for t in range(2):
                self.mfma(vr(vD+4*t), Slots.reg(slot[base+2*n+t]), vr(bb), "0" if n == 0 else vr(vD+4*t))
            sl.put(slot[base+2*n]); sl.put(slot[base+2*n+1])
            while st['issued'] < min(len(seq), base + 2*n + 2 + W) and issue_kv(): pass
            if n < 48 or wo_state['n'] < 64:
                for _ in range(2 if n % 2 == 0 else 1):
                    if P.inflight() < 62: issue_wo()
            if role == 'R':
                ml = self.c.get('ml_at', 46)
                hooks = {4: self.r_decode, 8: self.r_flags_issue, 12: self.r_flags_finish, 14: self.r_gate_issue, 18: self.r_gate_finish,
                         24: self.r_yb_issue, 28: self.r_yb_finish, ml: self.r_ml_issue, ml+4: self.r_ml_finish}
                if n in hooks: hooks[n]()
            if n == NG-8: tail_addresses()
        assert wo_state['n'] == 64, wo_state
        self.stamp(7)
        A("s_mov_b32 exec_lo, 0x00ff00ff"); A("s_mov_b32 exec_hi, 0x00ff00ff")
        A(f"ds_write2_b32 v{vU}, v{vD}, v{vD+1} offset0:0 offset1:32")
        A(f"ds_write2_b32 v{vU}, v{vD+2}, v{vD+3} offset0:64 offset1:96")
        A(f"ds_write2_b32 v{vU+1}, v{vD+4}, v{vD+5} offset0:0 offset1:32")
        A(f"ds_write2_b32 v{vU+1}, v{vD+6}, v{vD+7} offset0:64 offset1:96")
        A("s_mov_b64 exec, -1")
        P.lgkm0(); A("s_barrier")
        for m in range(4):
            A(f"ds_read_b128 {vr(vS+4*m)}, v{vU+2} offset:{m*256}")
        P.wait_all_vm()
        for m in range(4):
            A(f"s_waitcnt lgkmcnt({3-m})")
            A(f"v_add_f32 v{vS+4*m}, v{vS+4*m}, v{vS+4*m+1}")
            A(f"v_add_f32 v{vS+4*m+2}, v{vS+4*m+2}, v{vS+4*m+3}")
            A(f"v_add_f32 v{vS+4*m}, v{vS+4*m}, v{vS+4*m+2}")
            A(f"v_cvt_pk_bf16_f32 v{vS+4*m}, v{vS+4*m}, v{vS+4*m}")
        self.bops(vB, vS, 0)
        for n in range(16):
            bb = vB + 4*(n % 2)
            if n+1 < 16:
                self.bops(vB + 4*((n+1) % 2), vS + 4*((n+1) >> 2), 4*((n+1) & 3))
            for cb in range(4):
                self.mfma(vr(vY+4*cb), f"a[{16*n+4*cb}:{16*n+4*cb+3}]", vr(bb), "0" if n == 0 else vr(vY+4*cb))
        for cb in range(4):
            A(f"ds_write_b128 v{vU+4}, {vr(vY+4*cb)} offset:{L_YL + cb*1024}")
        P.lgkm0(); A("s_barrier")
        for k in range(4):
            A(f"ds_read_b128 {vr(vS+4*k)}, v{vU+5} offset:{L_YL + k*4096}")
        P.lgkm0()
        for r in range(4):
            A(f"v_add_f32 v{vS+r}, v{vS+r}, v{vS+4+r}")
            A(f"v_add_f32 v{vS+8+r}, v{vS+8+r}, v{vS+12+r}")
        for r in range(4):
            A(f"v_add_f32 v{vS+r}, v{vS+r}, v{vS+8+r}")
        for r in range(4):
            A(f"v_min_u32 v{vS+r}, -2, v{vS+r}")
        P.vmem(f"buffer_store_dwordx4 {vr(vS)}, v{vU+6}, {sr(rWS)}, s{sT3} offen sc1")
        self.stamp(8)
        if role == 'R':
            self.r_tail()
        self.stamp(9)
        self.diag_out()
        A("s_endpgm")

    def reduce_scores(self, n):
        A = self.A
        d = vD + 4*(n % 2); t = vU + 8
        A(f"v_add_f32_dpp v{t}, v{d+1}, v{d} quad_perm:[1,1,1,1] row_mask:0xf bank_mask:0xf")
        A(f"v_add_f32_dpp v{t+1}, v{d+3}, v{d+2} quad_perm:[3,3,3,3] row_mask:0xf bank_mask:0xf")
        A(f"v_add_f32_dpp v{vS + (n >> 2)}, v{t+1}, v{t} quad_perm:[2,2,2,2] row_mask:0xf bank_mask:{hex(1 << (n & 3))}")

    def diag_out(self):
        if not self.diag: return
        A = self.A; P = self.P
        A("s_getreg_b32 s42, hwreg(HW_REG_XCC_ID)")
        A(f"v_writelane_b32 v{vDG}, s42, 15")
        A(f"s_lshl_b32 s{sT0}, s2, 2"); A(f"s_add_u32 s{sT0}, s{sT0}, s{sW}"); A(f"s_lshl_b32 s{sT0}, s{sT0}, 6")
        A(f"s_add_u32 s{sT0}, s{sT0}, {W_STAMP}")
        A(f"v_lshlrev_b32 v{vDG+1}, 2, v{vL}")
        A(f"v_mov_b32 v{vDG+2}, 0x7ff00000")
        A(f"v_cmp_gt_u32 vcc, 16, v{vL}")
        A(f"v_cndmask_b32 v{vDG+1}, v{vDG+2}, v{vDG+1}, vcc")
        P.vmem(f"buffer_store_dword v{vDG}, v{vDG+1}, {sr(rWS)}, s{sT0} offen")

    def b_setup(self, sl):
        A = self.A; P = self.P
        st = dict(n=0, ops={}, slots={}, done=0)
        self.srd(rXB, pX, 1792)
        self.srd(rWD, pWD, 1792*896)
        vM3 = vRW; st['M3'] = vM3
        A(f"v_and_b32 v{vU}, 1, v{vI}"); A(f"v_mov_b32 v{vU+1}, 0xffff")
        A(f"v_lshlrev_b32 v{vU}, 4, v{vU}"); A(f"v_lshlrev_b32 v{vU+1}, v{vU}, v{vU+1}")
        A(f"v_bfe_u32 v{vU+2}, v{vI}, 1, 2")
        for r in range(4):
            A(f"v_cmp_eq_u32 vcc, {r}, v{vU+2}")
            A(f"v_cndmask_b32 v{vM3+r}, 0, v{vU+1}, vcc")
        vXB = vRW+4; st['XB'] = vXB
        A(f"s_mul_i32 s{sT0}, s{sW}, 112")
        st['xops'] = []
        for k in range(2):
            if k == 0: A(f"v_lshl_add_u32 v{vU}, v{vI}, 2, v{vG}")
            else:
                A(f"v_min_u32 v{vU}, 11, v{vI}"); A(f"v_add_u32 v{vU}, 16, v{vU}"); A(f"v_lshl_add_u32 v{vU}, v{vU}, 2, v{vG}")
            A(f"v_add_u32 v{vU}, s{sT0}, v{vU}")
            A(f"v_lshlrev_b32 v{vU}, 1, v{vU}")
            for b in range(2):
                st['xops'].append(P.vmem(f"buffer_load_ushort v{vXB+2*k+b}, v{vU}, {sr(rXB)}, 0 offen offset:{896*b}"))
        va = vY+8; st['va'] = va
        A(f"v_mov_b32 v{va}, s{pWU}"); A(f"v_mov_b32 v{va+1}, s{pWU+1}")
        A(f"v_mov_b32 v{vU}, s{pWG}"); A(f"v_mov_b32 v{vU+1}, s{pWG+1}")
        A(f"v_cmp_gt_u32 vcc, 8, v{vI}")
        A(f"v_cndmask_b32 v{va}, v{va}, v{vU}, vcc"); A(f"v_cndmask_b32 v{va+1}, v{va+1}, v{vU+1}, vcc")
        A(f"v_add_u32 v{vU}, s{sT0}, v{vG}")
        A(f"v_mul_u32_u24 v{vU}, 3584, v{vU}")
        A(f"v_and_b32 v{vU+1}, 7, v{vI}")
        A(f"v_lshl_add_u32 v{vU}, v{vU+1}, 4, v{vU}")
        A(f"s_lshl_b32 s{sT1}, s{sROLE}, 7")
        A(f"v_add_u32 v{vU}, s{sT1}, v{vU}")
        A(f"v_add_co_u32 v{va}, vcc, v{va}, v{vU}")
        A(f"v_addc_co_u32 v{va+1}, vcc, 0, v{va+1}, vcc")
        for _ in range(12): self.b_issue(sl, st)
        return st
    def b_issue(self, sl, st):
        n = st['n']
        if n >= 28: return False
        A = self.A; va = st['va']
        s = sl.getv(); st['slots'][n] = s
        st['ops'][n] = self.P.vmem(f"global_load_dwordx4 {sl.reg(s)}, v[{va}:{va+1}], off nt")
        if n < 27:
            A(f"v_add_co_u32 v{va}, vcc, 14336, v{va}")
            A(f"v_addc_co_u32 v{va+1}, vcc, 0, v{va+1}, vcc")
        st['n'] += 1
        return True
    def b_consume(self, sl, st):
        A = self.A; P = self.P
        n = st['done']; vXB = st['XB']; vM3 = st['M3']
        if n == 0:
            P.wait_vm(st['xops'][-1])
            for k in range(4): A(f"v_lshl_or_b32 v{vXB+k}, v{vXB+k}, 16, v{vXB+k}")
        k, ln = n // 16, n % 16
        t = vY+10; bb = vY+12
        A(f"v_mov_b32_dpp v{t}, v{vXB+2*k} row_newbcast:{ln} row_mask:0xf bank_mask:0x3")
        A(f"v_mov_b32_dpp v{t}, v{vXB+2*k+1} row_newbcast:{ln} row_mask:0xf bank_mask:0xc")
        for r in range(4): A(f"v_and_b32 v{bb+r}, v{t}, v{vM3+r}")
        P.wait_vm(st['ops'][n])
        self.mfma(vr(vY), sl.reg(st['slots'][n]), vr(bb), "0" if n == 0 else vr(vY))
        sl.put(st['slots'][n]); st['done'] += 1
    def b_stream(self, sl, st, k):
        for _ in range(k):
            if st['done'] < st['n'] and st['done'] < 28:
                self.b_consume(sl, st); self.b_issue(sl, st)
    def b_rest(self, sl, st):
        A = self.A; P = self.P
        vo = vY+11
        A(f"s_lshl_b32 s{sT0}, s{sROLE}, 6"); A(f"s_lshl_b32 s{sT1}, s{sW}, 4"); A(f"s_add_u32 s{sT0}, s{sT0}, s{sT1}")
        A(f"v_add_u32 v{vo}, s{sT0}, v{vG}")
        A(f"v_mul_u32_u24 v{vo}, 896, v{vo}")
        A(f"v_lshl_add_u32 v{vo}, v{vI}, 4, v{vo}")
        dops = {}; dsl = {}
        nd = 0
        def issue_d():
            nonlocal nd
            if nd >= 16: return
            n, cb = nd//4, nd % 4
            s = sl.getv(); dsl[nd] = s
            A(f"s_mov_b32 s{sOFF}, {n*3584}")
            dops[nd] = P.vmem(f"buffer_load_dwordx4 {sl.reg(s)}, v{vo}, {sr(rWD)}, s{sOFF} offen offset:{[0,256,512,640][cb]} nt")
            nd += 1
        while st['done'] < 28:
            self.b_consume(sl, st)
            if not self.b_issue(sl, st): issue_d()
        while nd < 16: issue_d()
        A(f"v_lshlrev_b32 v{vU}, 4, v{vL}")
        A(f"s_lshl_b32 s{sT0}, s{sW}, 10")
        A(f"v_add_u32 v{vU}, s{sT0}, v{vU}")
        A(f"ds_write_b128 v{vU}, {vr(vY)} offset:{L_YL}")
        A(f"v_and_b32 v{vU+1}, 3, v{vI}")
        A(f"v_lshl_add_u32 v{vU+1}, v{vU+1}, 2, v{vG}")
        A(f"s_lshl_b32 s{sT0}, s{sW}, 4")
        A(f"v_add_u32 v{vU+1}, s{sT0}, v{vU+1}")
        A(f"v_and_b32 v{vU+2}, 7, v{vU+1}")
        A(f"v_and_b32 v{vU+3}, 8, v{vI}")
        A(f"v_add_u32 v{vU+2}, v{vU+2}, v{vU+3}")
        A(f"v_lshrrev_b32 v{vU+3}, 5, v{vU+1}")
        A(f"v_lshl_add_u32 v{vU+2}, v{vU+3}, 4, v{vU+2}")
        A(f"v_lshlrev_b32 v{vU+2}, 4, v{vU+2}")
        A(f"v_bfe_u32 v{vU+3}, v{vU+1}, 3, 2")
        A(f"v_lshl_add_u32 v{vU+2}, v{vU+3}, 2, v{vU+2}")
        P.lgkm0(); A("s_barrier")
        for k in range(4):
            A(f"ds_read_b32 v{vY+k}, v{vU+2} offset:{L_YL + k*1024}")
            A(f"ds_read_b32 v{vY+4+k}, v{vU+2} offset:{L_YL + k*1024 + 512}")
        P.lgkm0()
        A(f"v_add_f32 v{vY}, v{vY}, v{vY+1}"); A(f"v_add_f32 v{vY+2}, v{vY+2}, v{vY+3}"); A(f"v_add_f32 v{vY}, v{vY}, v{vY+2}")
        A(f"v_add_f32 v{vY+4}, v{vY+4}, v{vY+5}"); A(f"v_add_f32 v{vY+6}, v{vY+6}, v{vY+7}"); A(f"v_add_f32 v{vY+4}, v{vY+4}, v{vY+6}")
        A(f"v_mul_f32 v{vY}, {hex(f2u(-math.log2(math.e)))}, v{vY}")
        A(f"v_exp_f32 v{vY}, v{vY}")
        A(f"v_add_f32 v{vY}, 1.0, v{vY}")
        A(f"v_rcp_f32 v{vY}, v{vY}")
        A(f"v_mul_f32 v{vY}, v{vY}, v{vY+4}")
        vH = vY+8
        A(f"v_cvt_pk_bf16_f32 v{vH}, v{vY}, v{vY}")
        A("s_barrier")
        vM3 = st['M3']; t = vY+9
        acc = vS
        for n in range(4):
            bb = vB + 4*(n % 2)
            A(f"v_mov_b32_dpp v{t}, v{vH} row_newbcast:{n} row_mask:0xf bank_mask:0x3")
            A(f"v_mov_b32_dpp v{t}, v{vH} row_newbcast:{8+n} row_mask:0xf bank_mask:0xc")
            for r in range(4): A(f"v_and_b32 v{bb+r}, v{t}, v{vM3+r}")
            for cb in range(4):
                P.wait_vm(dops[4*n+cb])
                self.mfma(vr(acc+4*cb), sl.reg(dsl[4*n+cb]), vr(bb), "0" if n == 0 else vr(acc+4*cb))
                sl.put(dsl[4*n+cb])
        A(f"v_lshlrev_b32 v{vU}, 4, v{vL}")
        A(f"s_lshl_b32 s{sT0}, s{sW}, 12")
        A(f"v_add_u32 v{vU+1}, s{sT0}, v{vU}")
        for cb in range(4):
            A(f"ds_write_b128 v{vU+1}, {vr(acc+4*cb)} offset:{L_YL + cb*1024}")
        A(f"s_lshl_b32 s{sT0}, s{sW}, 10")
        A(f"v_add_u32 v{vU}, s{sT0}, v{vU}")
        P.lgkm0(); A("s_barrier")
        for k in range(4):
            A(f"ds_read_b128 {vr(acc+4*k)}, v{vU} offset:{L_YL + k*4096}")
        P.lgkm0()
        for r in range(4):
            A(f"v_add_f32 v{acc+r}, v{acc+r}, v{acc+4+r}")
            A(f"v_add_f32 v{acc+8+r}, v{acc+8+r}, v{acc+12+r}")
        for r in range(4):
            A(f"v_add_f32 v{acc+r}, v{acc+r}, v{acc+8+r}")
        for r in range(4):
            A(f"v_min_u32 v{acc+r}, -2, v{acc+r}")
        A(f"s_lshl_b32 s{sT0}, s{sROLE}, 12")
        A(f"s_add_u32 s{sT0}, s{sT0}, {W_YB}")
        P.vmem(f"buffer_store_dwordx4 {vr(acc)}, v{vU}, {sr(rWS)}, s{sT0} offen sc1")

    def r_decode(self):
        A = self.A; P = self.P
        A(f"s_cmp_ge_u32 s{sROLE}, 28")
        A(f"s_cselect_b32 s{sRB}, 1, 0")
        A(f"s_mul_i32 s{sT0}, s{sRB}, 28")
        A(f"s_sub_u32 s{sT0}, s{sROLE}, s{sT0}")
        A(f"s_lshr_b32 s{sT1}, s{sT0}, 1")
        A(f"s_and_b32 s{sT0}, s{sT0}, 1")
        A(f"s_lshr_b32 s{sT2}, s{sT1}, 2")
        A(f"s_and_b32 s{sT3}, s{sT1}, 3")
        A(f"s_cmp_ge_u32 s{sT1}, 12")
        A(f"s_cselect_b32 s{sOFF}, 2, 0")
        A(f"s_add_u32 s{sT3}, s{sT3}, s{sOFF}")
        A(f"s_lshl_b32 s{sRY}, s{sRB}, 18")
        A(f"s_lshl_b32 s{sOFF}, s{sT2}, 9"); A(f"s_add_u32 s{sRY}, s{sRY}, s{sOFF}")
        A(f"s_lshl_b32 s{sOFF}, s{sT3}, 7"); A(f"s_add_u32 s{sRY}, s{sRY}, s{sOFF}")
        A(f"s_lshl_b32 s{sOFF}, s{sT0}, 6"); A(f"s_add_u32 s{sRY}, s{sRY}, s{sOFF}")
        A(f"s_add_u32 s{sRY}, s{sRY}, {W_Y}")
        A(f"s_lshl_b32 s{sRYB}, s{sT2}, 10")
        A(f"s_lshl_b32 s{sOFF}, s{sT3}, 8"); A(f"s_add_u32 s{sRYB}, s{sRYB}, s{sOFF}")
        A(f"s_lshl_b32 s{sOFF}, s{sRB}, 7"); A(f"s_add_u32 s{sRYB}, s{sRYB}, s{sOFF}")
        A(f"s_lshl_b32 s{sOFF}, s{sT0}, 6"); A(f"s_add_u32 s{sRYB}, s{sRYB}, s{sOFF}")
        A(f"s_add_u32 s{sRYB}, s{sRYB}, {W_YB}")
        A(f"s_lshl_b32 s{sRCOL}, s{sT2}, 7")
        A(f"s_cmp_eq_u32 s{sT2}, 3")
        A(f"s_cselect_b32 s{sRCOL}, 320, s{sRCOL}")
        A(f"s_lshl_b32 s{sOFF}, s{sT3}, 5"); A(f"s_add_u32 s{sRCOL}, s{sRCOL}, s{sOFF}")
        A(f"s_lshl_b32 s{sOFF}, s{sT0}, 2"); A(f"s_add_u32 s{sRCOL}, s{sRCOL}, s{sOFF}")
        self.st['last'] = None
        v = vU
        A(f"v_lshrrev_b32 v{v}, 4, v{vTID}")
        A(f"v_lshlrev_b32 v{vRX}, 14, v{v}")
        A(f"v_lshl_add_u32 v{vRX}, v{vI}, 2, v{vRX}")
        A(f"v_lshlrev_b32 v{vRX+1}, 2, v{v}")
        A(f"v_lshl_add_u32 v{vRX+1}, v{vI}, 6, v{vRX+1}")
        A(f"v_lshlrev_b32 v{vRX+2}, 6, v{vI}")
        A(f"v_and_b32 v{v+1}, 3, v{vI}"); A(f"v_lshlrev_b32 v{v+1}, 3, v{v+1}")
        A(f"v_lshrrev_b32 v{v+2}, 2, v{vI}"); A(f"v_add_u32 v{v+1}, v{v+1}, v{v+2}")
        A(f"v_add_u32 v{v+1}, s{sRCOL}, v{v+1}")
        A(f"s_mul_i32 s{sT3}, s{sRB}, 448")
        A(f"v_add_u32 v{v+1}, s{sT3}, v{v+1}")
        A(f"v_lshlrev_b32 v{v+1}, 1, v{v+1}")
        A(f"v_mov_b32 v{v+2}, 0x7ff00000")
        A(f"v_cmp_gt_u32 vcc, 16, v{vTID}")
        A(f"v_cndmask_b32 v{vRX+3}, v{v+2}, v{v+1}, vcc")
        self.srd(rOUT, pOUT, 1792)
    def r_flags_issue(self):
        A = self.A; P = self.P; v = vU
        A(f"v_and_b32 v{v}, 31, v{vL}"); A(f"v_lshlrev_b32 v{v}, 2, v{v}")
        self.r_op = P.vmem(f"buffer_load_dword v{v+1}, v{v}, {sr(rDBG)}, 0 offen sc1")
    def r_flags_finish(self):
        A = self.A; P = self.P; v = vU
        P.wait_vm(self.r_op)
        A(f"v_cmp_ne_u32 vcc, 8, v{v+1}")
        A("s_cbranch_vccz L_rflag_ok")
        self.spin_head()
        P.label("L_rflag_spin")
        A(f"buffer_load_dword v{v+1}, v{v}, {sr(rDBG)}, 0 offen sc1")
        A("s_waitcnt vmcnt(0)")
        A(f"v_cmp_ne_u32 vcc, 8, v{v+1}")
        A("s_cbranch_vccz L_rflag_ok")
        self.spin_tail("L_rflag_spin", "L_rflag_ok")
        P.label("L_rflag_ok")
    def r_gate_issue(self):
        A = self.A; P = self.P; v = vU
        A(f"s_mul_i32 s{sT0}, s{sRB}, 896")
        self.srd(rTMP, pX, 896, sT0)
        self.srd(rGW, pGW, 896)
        A(f"v_lshlrev_b32 v{v}, 4, v{vL}")
        P.vmem(f"buffer_load_dwordx4 {vr(vY)}, v{v}, {sr(rTMP)}, 0 offen")
        self.r_op = P.vmem(f"buffer_load_dwordx4 {vr(vY+4)}, v{v}, {sr(rGW)}, 0 offen")
    def r_gate_finish(self):
        A = self.A; P = self.P; v = vU
        P.wait_vm(self.r_op)
        A(f"v_mov_b32 v{v}, 0")
        for k in range(4):
            A(f"v_dot2_f32_bf16 v{v}, v{vY+k}, v{vY+4+k}, v{v}")
        for sh in (8, 4, 2, 1):
            A(f"v_add_f32_dpp v{v}, v{v}, v{v} row_ror:{sh} row_mask:0xf bank_mask:0xf")
        A(f"v_mov_b32 v{v+1}, v{v}")
        A(f"v_permlane16_swap_b32 v{v}, v{v+1}")
        A(f"v_add_f32 v{v}, v{v}, v{v+1}")
        A(f"v_mov_b32 v{v+1}, v{v}")
        A(f"v_permlane32_swap_b32 v{v}, v{v+1}")
        A(f"v_add_f32 v{v}, v{v}, v{v+1}")
        A(f"v_mul_f32 v{v}, {hex(f2u(-math.log2(math.e)))}, v{v}")
        A(f"v_exp_f32 v{v}, v{v}")
        A(f"v_add_f32 v{v}, 1.0, v{v}")
        A(f"v_rcp_f32 v{vRW}, v{v}")
    def r_yb_issue(self):
        A = self.A; P = self.P; v = vU
        A(f"v_lshrrev_b32 v{v}, 4, v{vTID}")
        A(f"v_lshlrev_b32 v{v+1}, 12, v{v}")
        A(f"v_lshl_add_u32 v{v+1}, v{vI}, 2, v{v+1}")
        A(f"v_add_u32 v{v+2}, 65536, v{v+1}")
        A(f"v_mov_b32 v{v+3}, 0x7ff00000")
        A(f"v_cmp_gt_u32 vcc, 12, v{v}")
        A(f"v_cndmask_b32 v{v+2}, v{v+3}, v{v+2}, vcc")
        P.vmem(f"buffer_load_dword v{v+4}, v{v+1}, {sr(rWS)}, s{sRYB} offen sc1")
        self.r_op = P.vmem(f"buffer_load_dword v{v+5}, v{v+2}, {sr(rWS)}, s{sRYB} offen sc1")
    def r_yb_finish(self):
        A = self.A; P = self.P; v = vU
        P.wait_vm(self.r_op)
        A(f"v_max_u32 v{v+6}, v{v+4}, v{v+5}")
        A(f"v_cmp_eq_u32 vcc, -1, v{v+6}")
        A("s_cbranch_vccz L_ryb_ok")
        self.spin_head()
        P.label("L_ryb_spin")
        A(f"buffer_load_dword v{v+4}, v{v+1}, {sr(rWS)}, s{sRYB} offen sc1")
        A(f"buffer_load_dword v{v+5}, v{v+2}, {sr(rWS)}, s{sRYB} offen sc1")
        A("s_waitcnt vmcnt(0)")
        A(f"v_max_u32 v{v+6}, v{v+4}, v{v+5}")
        A(f"v_cmp_eq_u32 vcc, -1, v{v+6}")
        A("s_cbranch_vccz L_ryb_ok")
        self.spin_tail("L_ryb_spin", "L_ryb_ok")
        P.label("L_ryb_ok")
        A(f"v_add_f32 v{v+4}, v{v+4}, v{v+5}")
        A(f"v_sub_f32 v{v+5}, 1.0, v{vRW}")
        A(f"v_mul_f32 v{vRA}, v{v+4}, v{v+5}")
    def _ml_loads(self, track):
        A = self.A; P = self.P; v = vU; o = None
        for k in range(4):
            t = f"buffer_load_dwordx4 {vr(vY+4*k)}, v{v}, {sr(rWS)}, s{sT0} offen offset:{16*k} sc1"
            o = P.vmem(t) if track else A(t)
        return o
    def r_ml_issue(self):
        A = self.A; P = self.P; v = vU
        A(f"v_lshrrev_b32 v{v}, 4, v{vTID}")
        A(f"v_lshlrev_b32 v{v}, 6, v{v}")
        A(f"s_lshl_b32 s{sT0}, s{sRB}, 10")
        A(f"s_add_u32 s{sT0}, s{sT0}, {W_ML}")
        self.r_op = self._ml_loads(True)
    def r_ml_finish(self):
        A = self.A; P = self.P; v = vU
        def check():
            A(f"v_max3_u32 v{v+1}, v{vY}, v{vY+1}, v{vY+2}")
            for k in range(3, 15, 2): A(f"v_max3_u32 v{v+1}, v{v+1}, v{vY+k}, v{vY+k+1}")
            A(f"v_max_u32 v{v+1}, v{v+1}, v{vY+15}")
            A(f"v_cmp_eq_u32 vcc, -1, v{v+1}")
            A("s_cbranch_vccz L_rml_ok")
        P.wait_vm(self.r_op); check()
        self.spin_head()
        P.label("L_rml_spin")
        A(f"s_lshl_b32 s{sT0}, s{sRB}, 10")
        A(f"s_add_u32 s{sT0}, s{sT0}, {W_ML}")
        self._ml_loads(False); A("s_waitcnt vmcnt(0)"); check()
        self.spin_tail("L_rml_spin", "L_rml_ok")
        P.label("L_rml_ok")
        M = v+1
        A(f"v_max3_f32 v{M}, v{vY}, v{vY+2}, v{vY+4}")
        A(f"v_max3_f32 v{M}, v{M}, v{vY+6}, v{vY+8}")
        A(f"v_max3_f32 v{M}, v{M}, v{vY+10}, v{vY+12}")
        A(f"v_max_f32 v{M}, v{M}, v{vY+14}")
        for s in range(8): A(f"v_sub_f32 v{vY+2*s}, v{vY+2*s}, v{M}")
        for s in range(8): A(f"v_exp_f32 v{vY+2*s}, v{vY+2*s}")
        A(f"v_mul_f32 v{v+2}, v{vY}, v{vY+1}")
        for s in range(1, 8): A(f"v_fmac_f32 v{v+2}, v{vY+2*s}, v{vY+2*s+1}")
        A(f"v_rcp_f32 v{v+2}, v{v+2}")
        A(f"v_mul_f32 v{v+2}, v{v+2}, v{vRW}")
        for s in range(8): A(f"v_mul_f32 v{vRW+s}, v{vY+2*s}, v{v+2}")
    def r_tail(self):
        A = self.A; P = self.P; v = vU
        A(f"s_add_u32 s{sT0}, s{sRY}, 4096"); A(f"s_add_u32 s{sT1}, s{sRY}, 8192"); A(f"s_add_u32 s{sT2}, s{sRY}, 12288")
        self.spin_head()
        P.label("L_ry_spin")
        bases = [sRY, sT0, sT1, sT2]
        for s in range(8):
            A(f"buffer_load_dword v{vY+s}, v{vRX}, {sr(rWS)}, s{bases[s//2]} offen offset:{(s % 2)*2048} sc1")
        A("s_waitcnt vmcnt(0)")
        P.vm = []
        A(f"v_max3_u32 v{v+5}, v{vY}, v{vY+1}, v{vY+2}")
        A(f"v_max3_u32 v{v+5}, v{v+5}, v{vY+3}, v{vY+4}")
        A(f"v_max3_u32 v{v+5}, v{v+5}, v{vY+5}, v{vY+6}")
        A(f"v_max_u32 v{v+5}, v{v+5}, v{vY+7}")
        A(f"v_cmp_eq_u32 vcc, -1, v{v+5}")
        A("s_cbranch_vccz L_ry_ok")
        self.spin_tail("L_ry_spin", "L_ry_ok")
        P.label("L_ry_ok")
        for s in range(8): A(f"v_fmac_f32 v{vRA}, v{vY+s}, v{vRW+s}")
        A(f"ds_write_b32 v{vRX+1}, v{vRA} offset:{L_RED}")
        P.lgkm0(); A("s_barrier")
        for k in range(4): A(f"ds_read_b128 {vr(vY+4*k)}, v{vRX+2} offset:{L_RED+16*k}")
        P.lgkm0()
        for a_, b_ in [(0,1),(2,3),(4,5),(6,7),(8,9),(10,11),(12,13),(14,15),(0,2),(4,6),(8,10),(12,14),(0,4),(8,12),(0,8)]:
            A(f"v_add_f32 v{vY+a_}, v{vY+a_}, v{vY+b_}")
        A(f"v_cvt_pk_bf16_f32 v{vY}, v{vY}, v{vY}")
        P.vmem(f"buffer_store_short v{vY}, v{vRX+3}, {sr(rOUT)}, 0 offen")

    def build(self):
        P = self.P
        cm = ["; fused decode step: MHA over a cached KV + GLU branch, gated mix (see generator notes below)"]
        P.L += header(NAME, 256, 256, LDS_BYTES, cm)
        self.prologue()
        for role in ('N', 'R', 'B'):
            self.program(role)
        P.label("L_end"); self.A("s_endpgm")
        P.L += footer(NAME, 512, 256, 102)
        return P.text()

if __name__ == "__main__":
    cfg = eval(sys.argv[2]) if len(sys.argv) > 2 else {}
    g = Gen(cfg)
    txt = g.build()
    out = sys.argv[1] if len(sys.argv) > 1 else "k.s"
    open(out, "w").write(txt)
    print("instructions", g.P.ninst, "nops", g.P.nops, "bytes(text)", len(txt))
```
